```python
import torch

def _softmax(x, axis=-1):
    return torch.softmax(x, dim=axis)
def _gelu(x):
    return torch.nn.functional.gelu(x, approximate="tanh")
def _silu(x):
    return torch.nn.functional.silu(x)
def _sigmoid(x):
    return torch.sigmoid(x)
def _layernorm(x, axis=-1, eps=1e-5):
    m = x.mean(dim=axis, keepdim=True)
    v = x.var(dim=axis, keepdim=True, unbiased=False)
    return (x - m) / torch.sqrt(v + eps)
def _scatter_add(tgt, idx, src, axis=0):
    return tgt.clone().index_add_(axis, idx, src)
def _segment_sum(src, seg, n):
    out = torch.zeros((n,) + src.shape[1:], dtype=src.dtype)
    return out.index_add_(0, seg, src)
def _pad(x, pw):
    flat = tuple(v for pair in reversed(pw) for v in pair)
    return torch.nn.functional.pad(x, flat)

kernel_name = 'gated_mix__mha_block__ssm_conv_h3__prompt'

def setup_inputs():

    _w = (lambda a: (lambda t: t.to(torch.bfloat16) if t.is_floating_point() else t)(torch.as_tensor(a)))
    def _A_setup():
        B, S, D, H = 1, 2048, 640, 32
        return {
            "x": _w((lambda *s: torch.randn(*s, dtype=torch.bfloat16) * 0.05)(B, S, D)),
            "wqkv": _w((lambda *s: torch.randn(*s, dtype=torch.bfloat16) * 0.8)(D, 3 * D)),
            "wo": _w((lambda *s: torch.randn(*s, dtype=torch.bfloat16) * 0.05)(D, D)),
        }
    _A_in = _A_setup()

    def _B_setup():
        B, S, D = 1, 2048, 640
        ks = 4
        return {
            "q": _w((lambda *s: torch.randn(*s, dtype=torch.bfloat16) * 0.05)(B, S, D)),
            "k": _w((lambda *s: torch.randn(*s, dtype=torch.bfloat16) * 0.8)(B, S, D)),
            "v": _w((lambda *s: torch.randn(*s, dtype=torch.bfloat16) * 0.4)(B, S, D)),
            "shift_k": _w((lambda *s: torch.randn(*s, dtype=torch.bfloat16) * 0.8)(D, ks) * 0.5),
            "ssm_k": _w((lambda *s: torch.randn(*s, dtype=torch.bfloat16) * 0.8)(D, S) * (1.0 / S ** 0.5)),
            "ssm_D": _w((lambda *s: torch.randn(*s, dtype=torch.bfloat16) * 0.4)(D)),
        }
    _B_in = _B_setup()

    return {
        "A_x": _A_in["x"],
        "A_wqkv": _A_in["wqkv"],
        "A_wo": _A_in["wo"],
        "B_q": _B_in["q"],
        "B_k": _B_in["k"],
        "B_v": _B_in["v"],
        "B_shift_k": _B_in["shift_k"],
        "B_ssm_k": _B_in["ssm_k"],
        "B_ssm_D": _B_in["ssm_D"],
        "gate_w": _w((lambda *s: torch.randn(*s, dtype=torch.bfloat16) * 0.05)(640) * 16.0),
    }

def reference(A_x, A_wqkv, A_wo, B_q, B_k, B_v, B_shift_k, B_ssm_k, B_ssm_D, gate_w):
    def _A_ref(x, wqkv, wo):
        B, S, D = x.shape
        H = 32
        Dh = D // H
        qkv = (lambda x, *d: x.permute(*d))((x @ wqkv).reshape(B, S, 3, H, Dh), 2, 0, 3, 1, 4)
        q, k, v = qkv[0], qkv[1], qkv[2]
        scores = torch.einsum("bhqd,bhkd->bhqk", q, k) * (Dh ** -0.5)
        p = _softmax(scores, axis=-1)
        o = torch.einsum("bhqk,bhkd->bhqd", p, v)
        return (lambda x, *d: x.permute(*d))(o, 0, 2, 1, 3).reshape(B, S, D) @ wo

    def _B_ref(q, k, v, shift_k, ssm_k, ssm_D):
        B, S, D = q.shape
        ks = shift_k.shape[-1]
        k_pad = _pad(k, ((0, 0), (ks - 1, 0), (0, 0)))
        k_shift = torch.zeros_like(k)
        for t in range(ks):
            k_shift = k_shift + k_pad[:, t:t + S, :] * shift_k[:, ks - 1 - t][None, None, :]
        kv = k_shift * v
        L = 2 * S
        kv_pad = _pad(kv, ((0, 0), (0, S), (0, 0)))
        kf_pad = _pad(ssm_k, ((0, 0), (0, S)))
        kv_f = (lambda x, axes=(-2,-1): torch.fft.rfft2(x.float(), dim=axes))(kv_pad[:, None, :, :], axes=(1, 2))
        kf_f = (lambda x, axes=(-2,-1): torch.fft.rfft2(x.float(), dim=axes))(kf_pad[:, None, :], axes=(1, 2))
        kf_f = (lambda x, *d: x.permute(*d))(kf_f, 1, 2, 0)
        y_f = kv_f * kf_f[None, :, :, :]
        y = (lambda x, s, axes=(-2,-1): torch.fft.irfft2(x, s=s, dim=axes).to(torch.bfloat16))(y_f, (1, L), axes=(1, 2))[:, 0, :S, :]
        y = y + kv * ssm_D[None, None, :]
        return q * y

    x = A_x
    g = _sigmoid((x * gate_w).sum(-1, keepdims=True))
    a = _A_ref(x, A_wqkv, A_wo)
    b = _B_ref(x, B_k, B_v, B_shift_k, B_ssm_k, B_ssm_D)
    return g * a + (1 - g) * b
```

```python
import sys, os, subprocess, struct, ctypes
sys.path.insert(0, "cdna_kernels")
import numpy as np
import cdna_launch as cl

META = """
.amdgpu_metadata
---
amdhsa.version: [1, 2]
amdhsa.kernels:
  - .name: mb_kernel
    .symbol: mb_kernel.kd
    .kernarg_segment_size: 16
    .kernarg_segment_align: 8
    .group_segment_fixed_size: 0
    .private_segment_fixed_size: 0
    .wavefront_size: 64
    .sgpr_count: 102
    .vgpr_count: {vg}
    .max_flat_workgroup_size: 1024
    .args:
      - {{.name: kernargs, .size: 16, .offset: 0, .value_kind: by_value}}
...
.end_amdgpu_metadata
"""

def build(name, body, pre="", iters=200, vg=128, post=""):
    s = f""".amdgcn_target "amdgcn-amd-amdhsa--gfx950"
.text
.globl mb_kernel
.p2align 8
.type mb_kernel,@function
mb_kernel:
    s_load_dwordx2 s[4:5], s[0:1], 0
    s_load_dwordx2 s[6:7], s[0:1], 8
    v_lshrrev_b32 v1, 6, v0
    s_nop 1
    v_readfirstlane_b32 s3, v1
    v_and_b32 v2, 63, v0
    v_lshlrev_b32 v3, 4, v2
    s_waitcnt lgkmcnt(0)
    s_mov_b32 s8, s4
    s_mov_b32 s9, s5
    s_mov_b32 s10, 0x100000
    s_mov_b32 s11, 0x00020000
{pre}
    s_barrier
    s_mov_b32 s20, {iters}
    s_memtime s[12:13]
    s_waitcnt lgkmcnt(0)
.p2align 6
L_loop:
{body}
    s_sub_u32 s20, s20, 1
    s_cmp_lg_u32 s20, 0
    s_cbranch_scc1 L_loop
    s_nop 15
    s_nop 15
{post}
    s_memtime s[14:15]
    s_waitcnt lgkmcnt(0)
    s_sub_u32 s14, s14, s12
    s_lshl_b32 s16, s2, 4
    s_add_u32 s16, s16, s3
    s_lshl_b32 s16, s16, 2
    v_mov_b32 v1, s16
    v_mov_b32 v4, s14
    v_cmp_eq_u32 vcc, 0, v2
    s_and_saveexec_b64 s[18:19], vcc
    buffer_store_dword v4, v1, s[8:11], 0 offen
    s_waitcnt vmcnt(0)
    s_endpgm
.section .rodata,"a"
.p2align 6
.amdhsa_kernel mb_kernel
  .amdhsa_next_free_vgpr {vg}
  .amdhsa_next_free_sgpr 96
  .amdhsa_accum_offset {vg if vg<=256 else 256}
  .amdhsa_group_segment_fixed_size 0
  .amdhsa_kernarg_size 16
  .amdhsa_user_sgpr_count 2
  .amdhsa_user_sgpr_kernarg_segment_ptr 1
  .amdhsa_system_sgpr_workgroup_id_x 1
.end_amdhsa_kernel
""" + META.format(vg=vg)
    os.makedirs("mbs", exist_ok=True)
    p = f"mbs/{name}.s"
    open(p, "w").write(s)
    co = p[:-2] + ".co"
    r = subprocess.run(["clang", "-x", "assembler", "-target", "amdgcn-amd-amdhsa", "-mcpu=gfx950", p, "-o", co], capture_output=True, text=True)
    if r.returncode != 0:
        print(r.stderr); raise SystemExit(1)
    return co

_out = None
_in = None
def run(co, waves_per_simd, iters, nwg=256, lds=160*1024, label=""):
    global _out, _in
    if _out is None:
        _out = cl.DeviceBuffer(1<<20)
        _in = cl.DeviceBuffer.from_numpy((np.random.randn(1<<20).astype(np.float32)))
    k = cl.AsmKernel(co, "mb_kernel", check=False)
    cl._check(cl._hip.hipMemset(_out._ptr, 0, 1<<20))
    ka = struct.pack("<2Q", _out.ptr, _in.ptr)
    for _ in range(3):
        k.launch((nwg,1,1), (256*waves_per_simd,1,1), ka, lds)
    cl._check(cl._hip.hipDeviceSynchronize())
    o = _out.to_numpy(np.uint32, (1<<18,))
    o = o[:nwg*16].reshape(nwg,16)[:, :4*waves_per_simd].astype(np.float64)
    per = o / iters
    mx = per.max(axis=1)
    print(f"{label:50s} W={waves_per_simd}: wave min={per.min():8.1f} medmax={np.median(mx):8.1f} max={per.max():8.1f}  -> per-SIMD cyc per body = {np.median(mx)/waves_per_simd:8.1f}", flush=True)
    k.unload()
    return np.median(per)
```

```python
from mbhost import *
import sys
IT=20
UN=1
tests={}
srd="""    s_mov_b32 s24, s6
    s_mov_b32 s25, s7
    s_mov_b32 s26, 0x400000
    s_mov_b32 s27, 0x00020000
    s_lshl_b32 s30, s3, 14
    s_mov_b32 m0, s30
"""
def body(lds, step=128, op="dwordx4"):
    o=[]
    for i in range(16):
        o.append(f"    s_mov_b32 s31, {step*i}")
        if lds: o.append(f"    buffer_load_{op} v10, s[24:27], s31 offen lds")
        else:
            n={"dwordx4":4,"dwordx2":2,"dword":1}[op]
            r = f"v[{16+4*(i%8)}:{16+4*(i%8)+n-1}]" if n>1 else f"v{16+4*(i%8)}"
            o.append(f"    buffer_load_{op} {r}, v10, s[24:27], s31 offen")
        o.append("    s_waitcnt vmcnt(7)")
    return "\n".join(o)
for lds in (1,0):
    t="dma" if lds else "reg"
    tests[t+" stride2B"]=(srd+"    v_lshlrev_b32 v10, 1, v2\n", body(lds))
    tests[t+" stride4B"]=(srd+"    v_lshlrev_b32 v10, 2, v2\n", body(lds,256))
    tests[t+" stride4B+2"]=(srd+"    v_lshlrev_b32 v10, 2, v2\n    v_add_u32 v10, 2, v10\n", body(lds,256))
    tests[t+" stride8B"]=(srd+"    v_lshlrev_b32 v10, 3, v2\n", body(lds,512))
    tests[t+" stride16B"]=(srd+"    v_lshlrev_b32 v10, 4, v2\n", body(lds,1024))
    tests[t+" stride16B+2"]=(srd+"    v_lshlrev_b32 v10, 4, v2\n    v_add_u32 v10, 2, v10\n", body(lds,1024))
    tests[t+" stride16B+4"]=(srd+"    v_lshlrev_b32 v10, 4, v2\n    v_add_u32 v10, 4, v10\n", body(lds,1024))
    tests[t+" stride16B+8"]=(srd+"    v_lshlrev_b32 v10, 4, v2\n    v_add_u32 v10, 8, v10\n", body(lds,1024))
    tests[t+" stride64B"]=(srd+"    v_lshlrev_b32 v10, 6, v2\n", body(lds,16))
tests["reg x4 40lanes"]=(srd+"    v_lshlrev_b32 v10, 4, v2\n    s_mov_b32 exec_lo, 0xfffff\n    s_mov_b32 exec_hi, 0xfffff\n", body(0,1024))
tests["reg x2 dup halves"]=(srd+"    v_and_b32 v10, 31, v2\n    v_lshlrev_b32 v10, 3, v10\n", body(0,256,"dwordx2"))
tests["reg x2 lowhalf"]=(srd+"    v_and_b32 v10, 31, v2\n    v_lshlrev_b32 v10, 3, v10\n    s_mov_b32 exec_hi, 0\n", body(0,256,"dwordx2"))
tests["reg x4 32rows*32B pitch1280"]=(srd+"    v_and_b32 v10, 31, v2\n    v_mul_u32_u24 v10, 1280, v10\n    v_lshrrev_b32 v11, 5, v2\n    v_lshl_add_u32 v10, v11, 4, v10\n", body(0,32))
tests["reg x4 16rows*64B pitch1280"]=(srd+"    v_and_b32 v10, 15, v2\n    v_mul_u32_u24 v10, 1280, v10\n    v_lshrrev_b32 v11, 4, v2\n    v_lshl_add_u32 v10, v11, 4, v10\n", body(0,64))
for name,(pre,b) in tests.items():
    nm="".join(c if c.isalnum() else "_" for c in name)
    co=build(nm,(b+"\n")*UN,pre,IT,vg=128,post="    s_waitcnt vmcnt(0)\n    s_mov_b64 exec, -1")
    if len(sys.argv)>1: continue
    p=run(co,1,IT*UN*16*4,label=name+" (cyc per instr per CU)")
```

```python
import sys
sys.path.insert(0,'gen')
from mbhost import *
SLOT = list(range(36, 124, 4)) + list(range(156, 208, 4))
FA=lambda s,m: SLOT[16*s+m]; FB=lambda s,d: SLOT[16*s+8+d]
def body(order, rd, acc0=4):
    o=[]
    for rho in range(2):
        s=rho&1
        o.append("s_waitcnt lgkmcnt(0)")
        R=[]
        if rd:
            for k in range(8):
                R.append(f"ds_read_b128 v[{FB(1-s,k)}:{FB(1-s,k)+3}], v209 offset:{512*k+64*(7-rho)}")
                for q in range(2): R.append(f"ds_read_b64 v[{FA(1-s,k)+2*q}:{FA(1-s,k)+2*q+1}], v208 offset:{128*(8*k+rho)+16*q}")
        if order=="m": M=[(j,m) for m in range(8) for j in range(m,8)]
        elif order=="j": M=[(j,m) for j in range(8) for m in range(j+1)]
        elif order=="d": M=[(m+d,m) for d in range(8) for m in range(8-d)]
        elif order=="x":
            M=[(j,m) for m in range(4) for j in range(m,8)]
            rest=[(j,m) for m in range(4,8) for j in range(m,8)]
            out=[];
            for i,x in enumerate(M):
                out.append(x)
            M=out+rest
        for (j,m) in M:
            o.append(f"v_mfma_f32_16x16x32_bf16 v[{acc0+4*j}:{acc0+4*j+3}], v[{FA(s,m)}:{FA(s,m)+3}], v[{FB(s,j-m)}:{FB(s,j-m)+3}], v[{acc0+4*j}:{acc0+4*j+3}]")
            if R: o.append(R.pop(0))
    return "\n".join("    "+x for x in o)
pre="""    v_and_b32 v1, 15, v2
    v_lshrrev_b32 v3, 4, v2
    v_lshl_add_u32 v209, v1, 1, v3
    v_lshlrev_b32 v209, 4, v209
    v_add_u32 v209, 20000, v209
    v_and_b32 v209, 0xfff0, v209
    v_lshlrev_b32 v3, 3, v3
    v_sub_u32 v1, v1, v3
    v_add_u32 v1, 41, v1
    v_and_b32 v3, 1, v1
    v_mul_u32_u24 v3, 8328, v3
    v_lshrrev_b32 v1, 1, v1
    v_lshl_add_u32 v208, v1, 3, v3
"""
for order in "mjd":
    for rd in (0,1):
        co=build(f"cv{order}{rd}", body(order,rd), pre, 50, vg=256, post="    s_waitcnt lgkmcnt(0)")
        if len(sys.argv)>1: continue
        run(co,1,50*72,label=f"order {order} reads {rd} (cyc per mfma)")
```
